```python
import torch

def _softmax(x, axis=-1):
    return torch.softmax(x, dim=axis)
def _gelu(x):
    return torch.nn.functional.gelu(x, approximate="tanh")
def _silu(x):
    return torch.nn.functional.silu(x)
def _sigmoid(x):
    return torch.sigmoid(x)
def _layernorm(x, axis=-1, eps=1e-5):
    m = x.mean(dim=axis, keepdim=True)
    v = x.var(dim=axis, keepdim=True, unbiased=False)
    return (x - m) / torch.sqrt(v + eps)
def _scatter_add(tgt, idx, src, axis=0):
    return tgt.clone().index_add_(axis, idx, src)
def _segment_sum(src, seg, n):
    out = torch.zeros((n,) + src.shape[1:], dtype=src.dtype)
    return out.index_add_(0, seg, src)
def _pad(x, pw):
    flat = tuple(v for pair in reversed(pw) for v in pair)
    return torch.nn.functional.pad(x, flat)

kernel_name = 'standalone__batchnorm__sampling'

def setup_inputs():

    _w = (lambda a: (lambda t: t.to(torch.bfloat16) if t.is_floating_point() else t)(torch.as_tensor(a)))
    B, S, C = 1024, 4, 512
    K = 3
    return {
        "x": _w((lambda *s: torch.randn(*s, dtype=torch.bfloat16) * 0.05)(B, S, C)),
        "w": _w((lambda *s: torch.randn(*s, dtype=torch.bfloat16) * 0.05)(K, C, C) * (1.0 / (K * C) ** 0.5)),
        "mean": _w((lambda *s: torch.randn(*s, dtype=torch.bfloat16) * 0.05)(C) * 0.1),
        "var": _w(torch.abs((lambda *s: torch.randn(*s, dtype=torch.bfloat16) * 0.05)(C)) + 0.5),
        "g": _w((lambda *s: torch.randn(*s, dtype=torch.bfloat16) * 0.05)(C) + 1.0),
        "b": _w((lambda *s: torch.randn(*s, dtype=torch.bfloat16) * 0.05)(C) * 0.1),
    }

def reference(x, w, mean, var, g, b):
    K = 3
    P = K // 2
    S = x.shape[1]
    xp = _pad(x, ((0, 0), (P, P), (0, 0)))
    y = sum(torch.einsum('bsc,cd->bsd', xp[:, k:k + S, :], w[k]) for k in range(K))
    inv_std = 1.0 / torch.sqrt(var + 1e-5)
    y = (y - mean) * (g * inv_std) + b
    return _silu(y)
```

```python
HEADER = """; Kernarg layout for this problem (72 bytes, ptrs only, base s[0:1]):
; @launch grid=({grid},1,1) block=({block},1,1) lds={lds}
.amdgcn_target "amdgcn-amd-amdhsa--gfx950"
.text
.globl standalone__batchnorm__sampling_kernel
.p2align 8
.type standalone__batchnorm__sampling_kernel,@function
standalone__batchnorm__sampling_kernel:
"""
FOOTER = """.section .rodata,"a"
.p2align 6
.amdhsa_kernel standalone__batchnorm__sampling_kernel
  .amdhsa_next_free_vgpr {nvgpr}
  .amdhsa_next_free_sgpr {nsgpr}
  .amdhsa_accum_offset {accum}
  .amdhsa_group_segment_fixed_size 0
  .amdhsa_kernarg_size 72
  .amdhsa_user_sgpr_count 2
  .amdhsa_user_sgpr_kernarg_segment_ptr 1
  .amdhsa_system_sgpr_workgroup_id_x 1
{extra}.end_amdhsa_kernel
"""

class Asm:
    def __init__(self):
        self.l = []
    def __call__(self, s):
        for line in s.split("\n"):
            line = line.strip()
            if not line: continue
            if line.endswith(":"):
                self.l.append(line)
            else:
                self.l.append("    " + line)
    def text(self):
        return "\n".join(self.l) + "\n"

def finish(a, grid, block, lds, nvgpr, nsgpr, accum, extra=""):
    return HEADER.format(grid=grid, block=block, lds=lds) + a.text() + FOOTER.format(nvgpr=nvgpr, nsgpr=nsgpr, accum=accum, extra=extra)
```

```python
import sys
from common import *
STAMPS = "--stamps" in sys.argv
out = sys.argv[1]
a = Asm()
NST = 8
def stamp(i, real=False):
    if not STAMPS: return
    a(f"{'s_memrealtime' if real else 's_memtime'} s[{40+2*i}:{41+2*i}]")

a("s_cmp_ge_u32 s2, 256")
a("s_cbranch_scc1 L_end")
stamp(0, True); stamp(1)
a("s_load_dwordx16 s[4:19], s[0:1], 0")
if STAMPS: a("s_load_dwordx2 s[36:37], s[0:1], 64")
a("""
s_and_b32 s3, s2, 7            ; xcd
s_lshr_b32 s32, s2, 3          ; j 0..31
s_lshr_b32 s33, s3, 1          ; xm
s_and_b32 s34, s3, 1           ; xn
s_lshr_b32 s35, s32, 3         ; jm
s_and_b32 s32, s32, 7          ; jn
s_lshl_b32 s33, s33, 2
s_add_u32 s33, s33, s35        ; mt 0..15
s_lshl_b32 s34, s34, 3
s_add_u32 s34, s34, s32        ; nt 0..15
v_lshrrev_b32 v1, 6, v0
v_and_b32 v2, 63, v0           ; lane
s_nop 0
v_readfirstlane_b32 s35, v1
v_and_b32 v3, 15, v2           ; b in 16
v_lshrrev_b32 v4, 4, v2        ; g
""")
a("""
s_lshl_b32 s32, s33, 6
s_lshl_b32 s3, s35, 4
s_add_u32 s32, s32, s3
v_add_u32 v5, s32, v3
v_lshlrev_b32 v5, 12, v5
v_lshl_add_u32 v6, v4, 4, v5   ; v6 = x voffset
""")
a("""
v_and_b32 v8, 1, v4
v_lshlrev_b32 v8, 5, v8        ; (g&1)*32 B
v_lshrrev_b32 v9, 1, v4
v_lshlrev_b32 v9, 4, v9        ; (g>>1)*16 B
v_add3_u32 v7, v5, v8, v9
s_lshl_b32 s38, s34, 6
v_add_u32 v7, s38, v7
""")
a("""
v_lshrrev_b32 v8, 2, v2
v_lshlrev_b32 v8, 10, v8
v_lshrrev_b32 v9, 1, v2
v_lshrrev_b32 v10, 5, v2
v_xor_b32 v9, v9, v10
v_and_b32 v9, 1, v9
v_lshlrev_b32 v9, 5, v9
v_and_b32 v10, 1, v2
v_lshlrev_b32 v10, 4, v10
v_add3_u32 v8, v8, v9, v10
v_add_u32 v8, s38, v8
""")
a("""
v_lshlrev_b32 v9, 3, v4
v_add_u32 v9, s38, v9
""")
a("""
v_lshrrev_b32 v10, 2, v3       ; r4
v_lshl_add_u32 v10, v4, 3, v10 ; 8g + r4
v_lshlrev_b32 v10, 6, v10
v_and_b32 v11, 3, v2
v_lshl_add_u32 v10, v11, 3, v10
v_and_b32 v11, 1, v4
v_lshl_add_u32 v10, v11, 5, v10
v_xor_b32 v11, 32, v10
v_add_u32 v12, 0xc000, v10
v_add_u32 v13, 0xc000, v11
""")
a("s_waitcnt lgkmcnt(0)")
a("""
s_mov_b32 s20, s4
s_and_b32 s21, s5, 0xffff
s_mov_b32 s22, 0x400000
s_mov_b32 s23, 0x20000
s_mov_b32 s24, s6
s_and_b32 s25, s7, 0xffff
s_mov_b32 s26, 0x180000
s_mov_b32 s27, 0x20000
s_mov_b32 s28, s16
s_and_b32 s29, s17, 0xffff
s_mov_b32 s30, 0x400000
s_mov_b32 s31, 0x20000
""")
stamp(2)
for i, sp in enumerate((8, 10, 12, 14)):
    a(f"global_load_dwordx2 v[{16+4*i}:{17+4*i}], v9, s[{sp}:{sp+1}]")
    a(f"global_load_dwordx2 v[{18+4*i}:{19+4*i}], v9, s[{sp}:{sp+1}] offset:32")
a("s_mov_b32 s39, 0xaaaaaaab")
for i in range(24):
    a(f"s_add_u32 s3, s35, {4*i}")
    a("s_lshl_b32 m0, s3, 10")
    a("s_mul_hi_u32 s32, s3, s39")
    a("s_lshr_b32 s32, s32, 2       ; chunk = q/6")
    a("s_mul_i32 s33, s32, 6")
    a("s_sub_u32 s33, s3, s33       ; q%6")
    a("s_lshr_b32 s34, s33, 1       ; k")
    a("s_and_b32 s33, s33, 1        ; half")
    a("s_lshl_b32 s34, s34, 19")
    a("s_lshl_b32 s32, s32, 15")
    a("s_lshl_b32 s33, s33, 14")
    a("s_add_u32 s32, s32, s33")
    a("s_add_u32 s32, s32, s34")
    a("buffer_load_dwordx4 v8, s[24:27], s32 offen lds")
def xload(ch):
    for sp in range(4):
        r = (ch*4 + sp)*4
        a(f"buffer_load_dwordx4 a[{r}:{r+3}], v6, s[20:23], 0 offen offset:{sp*1024 + ch*64}")
PF = 7
for ch in range(PF): xload(ch)
stamp(3)
for i in range(32): a(f"v_mov_b32 v{32+i}, 0")
a(f"s_waitcnt vmcnt({PF*4})")
a("s_mov_b32 s3, 0x3727c5ac   ; 1e-5")
def unpack(dst, src, hi):
    if hi: a(f"v_and_b32 v{dst}, 0xffff0000, v{src}")
    else: a(f"v_lshlrev_b32 v{dst}, 16, v{src}")
def rnd(r):
    a(f"v_cvt_pk_bf16_f32 v{r}, v{r}, v{r}")
    a(f"v_lshlrev_b32 v{r}, 16, v{r}")
for j in range(8):
    src = j // 2; hi = j % 2
    unpack(80, 20 + src, hi)
    a("v_add_f32 v80, s3, v80")
    rnd(80)
    a("v_sqrt_f32 v80, v80")
    a("s_nop 0")
    rnd(80)
    a("v_rcp_f32 v80, v80")
    a("s_nop 0")
    rnd(80)
    unpack(81, 24 + src, hi)
    a(f"v_mul_f32 v{64+j}, v81, v80")
    rnd(64 + j)
    unpack(81, 16 + src, hi)
    unpack(82, 28 + src, hi)
    a(f"v_fma_f32 v{72+j}, -v81, v{64+j}, v82")
a("s_barrier")
stamp(4)
WF = 96
def wreads(ch, buf):
    for k in range(3):
        for T in range(2):
            r = WF + buf*24 + (k*2+T)*4
            off = ch*6144 + k*2048
            base = 10 + T
            if off >= 49152:
                off -= 49152; base = 12 + T
            a(f"ds_read_b64_tr_b16 v[{r}:{r+1}], v{base} offset:{off}")
            a(f"ds_read_b64_tr_b16 v[{r+2}:{r+3}], v{base} offset:{off+256}")
wreads(0, 0)
issued = PF
for ch in range(16):
    if issued < 16:
        xload(issued); issued += 1
    if ch + 1 < 16:
        wreads(ch+1, (ch+1) % 2)
        a(f"s_waitcnt vmcnt({(issued-ch-1)*4}) lgkmcnt(12)")
    else:
        a(f"s_waitcnt vmcnt(0) lgkmcnt(0)")
    for sp in range(4):
        for k in range(3):
            s = sp + 1 - k
            if s < 0 or s > 3: continue
            for T in range(2):
                acc = 32 + (s*2+T)*4
                wr = WF + (ch%2)*24 + (k*2+T)*4
                xr = (ch*4+sp)*4
                a(f"v_mfma_f32_16x16x32_bf16 v[{acc}:{acc+3}], v[{wr}:{wr+3}], a[{xr}:{xr+3}], v[{acc}:{acc+3}]")
stamp(5)
a("s_nop 7")
a("s_mov_b32 s3, 0xbfb8aa3b   ; -log2(e)")
for s in range(4):
    for T in range(2):
        for r in range(4):
            v = 32 + (s*2+T)*4 + r
            j = T*4 + r
            t = 84 + j
            a(f"v_fma_f32 v{v}, v{v}, v{64+j}, v{72+j}")
            a(f"v_mul_f32 v{t}, s3, v{v}")
            a(f"v_exp_f32 v{t}, v{t}")
    for j in range(8):
        a(f"v_add_f32 v{84+j}, 1.0, v{84+j}")
    for j in range(8):
        a(f"v_rcp_f32 v{84+j}, v{84+j}")
    for j in range(8):
        v = 32 + s*8 + j
        a(f"v_mul_f32 v{v}, v{v}, v{84+j}")
    o = 96 + s*4
    b = 32 + s*8
    a(f"v_cvt_pk_bf16_f32 v{o}, v{b}, v{b+1}")
    a(f"v_cvt_pk_bf16_f32 v{o+1}, v{b+2}, v{b+3}")
    a(f"v_cvt_pk_bf16_f32 v{o+2}, v{b+4}, v{b+5}")
    a(f"v_cvt_pk_bf16_f32 v{o+3}, v{b+6}, v{b+7}")
    a("s_nop 1")
    a(f"v_permlane16_swap_b32 v{o}, v{o+2}")
    a(f"v_permlane16_swap_b32 v{o+1}, v{o+3}")
    a(f"buffer_store_dwordx4 v[{o}:{o+3}], v7, s[28:31], 0 offen offset:{s*1024}")
if STAMPS:
    stamp(6)
    a("s_waitcnt vmcnt(0)")
    stamp(7, True)
    a("s_waitcnt lgkmcnt(0)")
    a("s_lshl_b32 s3, s2, 2")
    a("s_add_u32 s3, s3, s35")
    a(f"s_mul_i32 s3, s3, {NST*8}")
    a("v_mov_b32 v1, s3")
    a("s_mov_b64 exec, 1")
    for i in range(NST):
        a(f"v_mov_b32 v2, s{40+2*i}")
        a(f"v_mov_b32 v3, s{41+2*i}")
        a(f"global_store_dwordx2 v1, v[2:3], s[36:37] offset:{8*i}")
a("L_end:")
a("s_endpgm")
open(out, "w").write(finish(a, 256, 256, 98304, 144 + 256, 64, 144))
```
